```python
import torch

def _softmax(x, axis=-1):
    return torch.softmax(x, dim=axis)

def _gelu(x):
    return torch.nn.functional.gelu(x, approximate='tanh')

def _silu(x):
    return torch.nn.functional.silu(x)

def _sigmoid(x):
    return torch.sigmoid(x)

def _layernorm(x, axis=-1, eps=1e-05):
    m = x.mean(dim=axis, keepdim=True)
    v = x.var(dim=axis, keepdim=True, unbiased=False)
    return (x - m) / torch.sqrt(v + eps)

def _scatter_add(tgt, idx, src, axis=0):
    return tgt.clone().index_add_(axis, idx, src)

def _segment_sum(src, seg, n):
    out = torch.zeros((n,) + src.shape[1:], dtype=src.dtype)
    return out.index_add_(0, seg, src)

def _pad(x, pw):
    flat = tuple((v for pair in reversed(pw) for v in pair))
    return torch.nn.functional.pad(x, flat)
kernel_name = 'standalone__autoregressive_conv_wavenet__speech'

def setup_inputs():

    _w = lambda a: (lambda t: t.to(torch.bfloat16) if t.is_floating_point() else t)(torch.as_tensor(a))
    B, T, D, K = (2, 16000, 256, 5)
    return {'x': _w((lambda *s: torch.randn(*s, dtype=torch.bfloat16) * 0.1)(B, T, D)), 'w': _w((lambda *s: torch.randn(*s, dtype=torch.bfloat16) * 0.1)(K, D, 2 * D)), 'w_o': _w((lambda *s: torch.randn(*s, dtype=torch.bfloat16) * 0.05)(D, D))}

def reference(x, w, w_o):
    B, T, D = x.shape
    K = w.shape[0]
    dil = 2
    pad = (K - 1) * dil
    xp = _pad(x, ((0, 0), (pad, 0), (0, 0)))
    h = torch.einsum('btc,cd->btd', xp[:, pad:pad + T, :], w[0])
    for i in range(1, K):
        off = pad - i * dil
        h = h + torch.einsum('btc,cd->btd', xp[:, off:off + T, :], w[i])
    f = h[..., :D].clone()
    g = h[..., D:].clone()
    z = torch.tanh(f) * _sigmoid(g)
    return z @ w_o
```

```python
import sys

KN = "standalone__autoregressive_conv_wavenet__speech_kernel"
HEADER = """; Kernarg layout for this problem (48 bytes, ptrs only, base s[0:1]):
"""

PITCH = 544
XROWS = 136
ZB = XROWS * PITCH
LDS = ZB + 65536

ACC = 0
WF = 128
RAW = 160
XF = 224
TX = 240
vX = 244
vW0 = 245
vW1 = 246
vZ = 247
vZr = 248
vOut = 249
vWo = 250
vT0, vT1, vT2, vT3, vT4 = 251, 252, 253, 254, 255

sX, sW_, sWO, sOUT = 4, 8, 12, 16
sSELLO, sSELHI = 20, 21
sWAVE, sWV, sROLE = 22, 23, 24
sWoff, sTap, sIter, sBarIt, sDx, sTmp, sTmp2 = 25, 26, 27, 28, 29, 30, 31
sC0 = 32
sC1 = 34
sPTR = 36
sTile = 44
sOutOff = 45
sK0, sK1 = 46, 47
sDBG = 48
sTS = 52


class G:
    def __init__(self, timing=False):
        self.L = []
        self.timing = timing
        self.nts = 0

    def a(self, s):
        self.L.append("    " + s)

    def lab(self, s):
        self.L.append(s + ":")

    def ts(self, idx):
        if self.timing:
            self.a(f"s_memtime s[{sTS + 2 * idx}:{sTS + 2 * idx + 1}]")


def r4(b):
    return f"v[{b}:{b + 3}]"


def r2(b):
    return f"v[{b}:{b + 1}]"


def acc(tf, F, r=None):
    b = ACC + 16 * tf + 4 * F
    return b if r is None else b + r


def transform_ops(raw, wf, tx0):
    ops = []
    g = 0
    for d in range(2):
        for jp in range(2):
            x0 = tx0 + 2 * (g % 2)
            x1 = x0 + 1
            ra = raw + 4 * (2 * jp)
            rb = raw + 4 * (2 * jp + 1)
            ops.append(f"v_cndmask_b32_dpp v{x0}, v{ra + d + 2}, v{ra + d}, vcc row_ror:8 row_mask:0xf bank_mask:0xf")
            ops.append(f"v_cndmask_b32_dpp v{x1}, v{rb + d + 2}, v{rb + d}, vcc row_ror:8 row_mask:0xf bank_mask:0xf")
            ops.append(f"v_mov_b32_dpp v{ra + d + 2}, v{ra + d} row_ror:8 row_mask:0xf bank_mask:0x3")
            ops.append(f"v_mov_b32_dpp v{rb + d + 2}, v{rb + d} row_ror:8 row_mask:0xf bank_mask:0x3")
            ops.append(f"v_perm_b32 v{wf + 4 * (2 * d) + jp}, v{x1}, v{x0}, s{sSELLO}")
            ops.append(f"v_perm_b32 v{wf + 4 * (2 * d + 1) + jp}, v{x1}, v{x0}, s{sSELHI}")
            ops.append(f"v_perm_b32 v{wf + 4 * (2 * d) + 2 + jp}, v{rb + d + 2}, v{ra + d + 2}, s{sSELLO}")
            ops.append(f"v_perm_b32 v{wf + 4 * (2 * d + 1) + 2 + jp}, v{rb + d + 2}, v{ra + d + 2}, s{sSELHI}")
            g += 1
    return ops


def gen(timing=False):
    g = G(timing)
    a = g.a
    L = g.L
    L.append(HEADER + f"; @launch grid=(250,1,1) block=(512,1,1) lds={LDS}")
    L.append('.amdgcn_target "amdgcn-amd-amdhsa--gfx950"')
    L.append(".text")
    L.append(f".globl {KN}")
    L.append(".p2align 8")
    L.append(f".type {KN},@function")
    L.append(f"{KN}:")
    a("s_cmp_ge_u32 s2, 250")
    a("s_cbranch_scc1 L_END")
    g.ts(0)
    a(f"s_load_dwordx4 s[{sPTR}:{sPTR + 3}], s[0:1], 0")
    a(f"s_load_dwordx4 s[{sPTR + 4}:{sPTR + 7}], s[0:1], 16")
    if timing:
        a(f"s_load_dwordx2 s[{sDBG}:{sDBG + 1}], s[0:1], 32")
    a(f"v_lshrrev_b32 v{vT0}, 6, v0")
    a(f"v_and_b32 v{vT1}, 63, v0")
    a(f"v_readfirstlane_b32 s{sWAVE}, v{vT0}")
    a(f"v_and_b32 v{vT2}, 15, v0")
    a(f"v_bfe_u32 v{vT3}, v0, 4, 2")
    a(f"s_and_b32 s{sWV}, s{sWAVE}, 3")
    a(f"s_lshr_b32 s{sROLE}, s{sWAVE}, 2")
    a("s_cmp_ge_u32 s2, 125")
    a(f"s_cselect_b32 s{sTmp}, 125, 0")
    a(f"s_cselect_b32 s{sTmp2}, 8192000, 0")
    a(f"s_sub_u32 s{sTile}, s2, s{sTmp}")
    a(f"s_lshl_b32 s{sTile}, s{sTile}, 16")
    a(f"s_add_u32 s{sOutOff}, s{sTile}, s{sTmp2}")
    a(f"v_lshlrev_b32 v{vW0}, 13, v{vT3}")
    a(f"v_and_b32 v{vT4}, 8, v{vT2}")
    a(f"v_lshlrev_b32 v{vT4}, 9, v{vT4}")
    a(f"v_add_u32 v{vW0}, v{vW0}, v{vT4}")
    a(f"v_and_b32 v{vT4}, 7, v{vT2}")
    a(f"v_lshlrev_b32 v{vT4}, 4, v{vT4}")
    a(f"v_add_u32 v{vW0}, v{vW0}, v{vT4}")
    a(f"s_lshl_b32 s{sTmp}, s{sWAVE}, 7")
    a(f"v_add_u32 v{vW0}, s{sTmp}, v{vW0}")
    a(f"v_add_u32 v{vW1}, 0x8000, v{vW0}")
    a(f"s_mov_b32 s{sSELLO}, 0x05040100")
    a(f"s_mov_b32 s{sSELHI}, 0x07060302")
    a("s_waitcnt lgkmcnt(0)")
    a(f"s_add_u32 s{sX}, s{sPTR}, s{sTmp2}")
    a(f"s_addc_u32 s{sX + 1}, s{sPTR + 1}, 0")
    a(f"s_mov_b32 s{sX + 2}, 8192000")
    a(f"s_mov_b32 s{sX + 3}, 0x00020000")
    a(f"s_mov_b32 s{sW_}, s{sPTR + 2}")
    a(f"s_mov_b32 s{sW_ + 1}, s{sPTR + 3}")
    a(f"s_mov_b32 s{sW_ + 2}, 1310720")
    a(f"s_mov_b32 s{sW_ + 3}, 0x00020000")
    a(f"s_cmp_eq_u32 s{sROLE}, 0")
    a("s_cbranch_scc1 L_WLOAD")
    a(f"v_lshrrev_b32 v{vT0}, 3, v{vT1}")
    a(f"v_and_b32 v{vT4}, 7, v{vT1}")
    a(f"v_lshlrev_b32 v{vT4}, 4, v{vT4}")
    a(f"v_lshl_add_u32 v{vZ}, v{vT0}, 9, v{vT4}")
    a(f"s_lshl_b32 s{sTmp}, s{sWV}, 12")
    a(f"s_add_u32 s{sTmp}, s{sTmp}, s{sTile}")
    a(f"s_sub_u32 s{sTmp}, s{sTmp}, 4096")
    a(f"v_add_u32 v{vZr}, s{sTmp}, v{vZ}")
    a(f"buffer_load_dwordx4 {r4(0)}, v{vZr}, s[{sX}:{sX + 3}], 0 offen")
    a(f"v_add_u32 v{vOut}, 0x4000, v{vZr}")
    a(f"buffer_load_dwordx4 {r4(4)}, v{vOut}, s[{sX}:{sX + 3}], 0 offen")
    a(f"v_add_u32 v{vWo}, 0x8000, v{vZr}")
    a(f"buffer_load_dwordx4 {r4(8)}, v{vWo}, s[{sX}:{sX + 3}], 0 offen")
    a(f"v_add_u32 v{vX}, 0xc000, v{vZr}")
    a(f"buffer_load_dwordx4 {r4(12)}, v{vX}, s[{sX}:{sX + 3}], 0 offen")
    a(f"s_lshl_b32 s{sTmp}, s{sWV}, 7")
    a(f"s_add_u32 s{sTmp}, s{sTmp}, s{sTile}")
    a(f"s_add_u32 s{sTmp}, s{sTmp}, {128 * 512 - 4096}")
    a(f"v_add_u32 v{vZ}, s{sTmp}, v{vZ}")
    a(f"buffer_load_dwordx4 {r4(16)}, v{vZ}, s[{sX}:{sX + 3}], 0 offen")
    Gs = [vZr, vOut, vWo, vX]
    for c in range(1, 4):
        for i in range(4):
            a(f"buffer_load_dwordx4 {r4(20 + 16 * (c - 1) + 4 * i)}, v{Gs[i]}, s[{sX}:{sX + 3}], 0 offen offset:{128 * c}")
    g.lab("L_WLOAD")
    a(f"s_mov_b32 s{sWoff}, 262144")
    for st in range(4):
        vo = vW0 if st % 2 == 0 else vW1
        so = "0" if st < 2 else f"s{sWoff}"
        for j in range(4):
            a(f"buffer_load_dwordx4 {r4(RAW + 16 * st + 4 * j)}, v{vo}, s[{sW_}:{sW_ + 3}], {so} offen offset:{1024 * j}")
    a(f"s_mov_b32 s{sWoff}, {2 * 262144}")
    a(f"s_mov_b32 s{sTap}, 0")
    a(f"s_mov_b32 s{sK0}, {-2 * PITCH}")
    a(f"s_mov_b32 s{sK1}, 262144")
    a(f"s_mov_b32 s{sIter}, 0")
    a(f"s_mov_b32 s{sBarIt}, 2")
    a(f"s_cmp_eq_u32 s{sROLE}, 0")
    a("s_cbranch_scc1 L_COMMON")
    a(f"s_mov_b32 s{sBarIt}, 99")
    a("s_setprio 1")
    a(f"v_mul_u32_u24 v{vZ}, {PITCH}, v{vT0}")
    a(f"v_add_u32 v{vZ}, v{vZ}, v{vT4}")
    a(f"s_mul_i32 s{sTmp}, s{sWV}, {8 * PITCH}")
    a(f"v_add_u32 v{vZr}, s{sTmp}, v{vZ}")
    a(f"s_lshl_b32 s{sTmp}, s{sWV}, 7")
    a(f"s_add_u32 s{sTmp}, s{sTmp}, {128 * PITCH}")
    a(f"v_add_u32 v{vZ}, s{sTmp}, v{vZ}")
    for i in range(4):
        a(f"s_waitcnt vmcnt({32 - i})")
        a(f"ds_write_b128 v{vZr}, {r4(4 * i)} offset:{i * 32 * PITCH}")
    a("s_waitcnt vmcnt(28)")
    a(f"ds_write_b128 v{vZ}, {r4(16)}")
    a("s_waitcnt lgkmcnt(0)")
    a("s_barrier")
    k = 0
    for c in range(1, 4):
        for i in range(4):
            a(f"s_waitcnt vmcnt({27 - k})")
            a(f"ds_write_b128 v{vZr}, {r4(20 + 16 * (c - 1) + 4 * i)} offset:{i * 32 * PITCH + 128 * c}")
            k += 1
    a("s_waitcnt lgkmcnt(0)")
    a("s_branch L_COMMON2")
    g.lab("L_COMMON")
    a("s_setprio 3")
    g.lab("L_COMMON2")
    a(f"v_mul_u32_u24 v{vX}, {PITCH}, v{vT2}")
    a(f"v_lshl_add_u32 v{vX}, v{vT3}, 4, v{vX}")
    a(f"v_add_u32 v{vX}, {8 * PITCH}, v{vX}")
    a(f"v_lshlrev_b32 v{vZr}, 4, v{vT1}")
    a(f"v_add_u32 v{vZr}, {ZB}, v{vZr}")
    a(f"s_lshl_b32 s{sTmp}, s{sWV}, 11")
    a(f"v_add_u32 v{vZ}, s{sTmp}, v{vZr}")
    a("s_mov_b32 vcc_lo, 0x00ff00ff")
    a("s_mov_b32 vcc_hi, 0x00ff00ff")
    for i in range(128):
        a(f"v_mov_b32 v{ACC + i}, 0")
    a("s_waitcnt vmcnt(12)")
    for op in transform_ops(RAW, WF, TX):
        a(op)
    a("s_barrier")
    g.ts(1)
    for f in range(4):
        a(f"ds_read_b128 {r4(XF + 4 * f)}, v{vX} offset:{f * 16 * PITCH}")
    g.lab("L_LOOP")
    a(f"s_cmp_lg_u32 s{sIter}, s{sBarIt}")
    a("s_cbranch_scc1 L_NOBAR")
    a("s_barrier")
    g.lab("L_NOBAR")
    for u in range(4):
        half = u % 2
        wfc = WF + 16 * (u % 2)
        wfn = WF + 16 * ((u + 1) % 2)
        rawn = RAW + 16 * ((u + 1) % 4)
        rawl = RAW + 16 * (u % 4)
        ops = transform_ops(rawn, wfn, TX)
        a("s_waitcnt vmcnt(8)")
        for gi in range(8):
            xf = XF + 4 * (gi % 4)
            a("s_waitcnt lgkmcnt(3)")
            seq = []
            for F in range(4):
                seq.append(f"v_mfma_f32_16x16x32_bf16 {r4(acc(gi, F))}, {r4(wfc + 4 * F)}, {r4(xf)}, {r4(acc(gi, F))}")
            v = ops[4 * gi:4 * gi + 4]
            a(seq[0]); a(v[0]); a(v[1])
            a(seq[1]); a(v[2]); a(v[3])
            a(seq[2])
            if gi < 4:
                vo = vW0 if half == 0 else vW1
                a(f"buffer_load_dwordx4 {r4(rawl + 4 * gi)}, v{vo}, s[{sW_}:{sW_ + 3}], s{sWoff} offen offset:{1024 * gi}")
            if half == 1 and gi == 0:
                a(f"s_cmp_eq_u32 s{sTap}, 4")
                a(f"s_cselect_b32 s{sDx}, {4 * 2 * PITCH + 128}, s{sK0}")
            if half == 1 and gi == 4:
                a(f"s_cmp_eq_u32 s{sTap}, 2")
                a(f"s_cselect_b32 s{sTmp}, {65536 - 4 * 262144}, s{sK1}")
                a(f"s_add_u32 s{sWoff}, s{sWoff}, s{sTmp}")
            if half == 1 and gi == 5:
                a(f"s_add_u32 s{sTap}, s{sTap}, 1")
                a(f"s_cmp_eq_u32 s{sTap}, 5")
                a(f"s_cselect_b32 s{sTap}, 0, s{sTap}")
            a(seq[3])
            if gi < 4:
                off = (gi + 4) * 16 * PITCH + 64 * half
            else:
                off = (gi - 4) * 16 * PITCH + 64 * (1 - half)
            a(f"ds_read_b128 {r4(xf)}, v{vX} offset:{off}")
            if half == 1 and gi == 3:
                a(f"v_add_u32 v{vX}, s{sDx}, v{vX}")
    a(f"s_add_u32 s{sIter}, s{sIter}, 1")
    a(f"s_cmp_lt_u32 s{sIter}, 10")
    a("s_cbranch_scc1 L_LOOP")
    g.ts(2)
    a("s_waitcnt vmcnt(0) lgkmcnt(0)")
    a(f"s_mov_b32 s{sC1}, 1.0")
    a(f"s_mov_b32 s{sC1 + 1}, 1.0")
    a(f"s_cmp_eq_u32 s{sROLE}, 0")
    a("s_cbranch_scc0 L_BTAIL")
    a("s_setprio 0")
    a(f"s_mov_b32 s{sWO}, s{sPTR + 4}")
    a(f"s_mov_b32 s{sWO + 1}, s{sPTR + 5}")
    a(f"s_mov_b32 s{sWO + 2}, 131072")
    a(f"s_mov_b32 s{sWO + 3}, 0x00020000")
    a(f"s_mov_b32 s{sOUT}, s{sPTR + 6}")
    a(f"s_mov_b32 s{sOUT + 1}, s{sPTR + 7}")
    a(f"s_mov_b32 s{sOUT + 2}, 16384000")
    a(f"s_mov_b32 s{sOUT + 3}, 0x00020000")
    a(f"v_and_b32 v{vT0}, 1, v{vT3}")
    a(f"v_lshlrev_b32 v{vWo}, 14, v{vT0}")
    a(f"v_lshrrev_b32 v{vT0}, 1, v{vT3}")
    a(f"v_lshl_add_u32 v{vWo}, v{vT0}, 11, v{vWo}")
    a(f"v_and_b32 v{vT0}, 1, v{vT2}")
    a(f"v_lshl_add_u32 v{vWo}, v{vT0}, 12, v{vWo}")
    a(f"v_bfe_u32 v{vT0}, v{vT2}, 1, 1")
    a(f"v_lshl_add_u32 v{vWo}, v{vT0}, 6, v{vWo}")
    a(f"v_lshrrev_b32 v{vT0}, 2, v{vT2}")
    a(f"v_lshl_add_u32 v{vWo}, v{vT0}, 4, v{vWo}")
    a(f"s_lshl_b32 s{sTmp}, s{sWV}, 7")
    a(f"v_add_u32 v{vWo}, s{sTmp}, v{vWo}")
    a(f"v_lshlrev_b32 v{vOut}, 9, v{vT2}")
    a(f"v_lshl_add_u32 v{vOut}, v{vT3}, 4, v{vOut}")
    a(f"v_add_u32 v{vOut}, s{sTmp}, v{vOut}")

    def wo_loads(batch):
        for kk4 in range(4):
            kk = 4 * batch + kk4
            a(f"s_mov_b32 s{sTmp}, {32768 * (kk // 2) + 8192 * (kk % 2)}")
            for j in range(4):
                a(f"buffer_load_dwordx4 {r4(RAW + 16 * kk4 + 4 * j)}, v{vWo}, s[{sWO}:{sWO + 3}], s{sTmp} offen offset:{512 * j}")

    def wo_transform(batch):
        for kk4 in range(4):
            kk = 4 * batch + kk4
            raw = RAW + 16 * kk4
            dst = 16 * kk
            T = XF
            a("s_mov_b32 vcc_lo, 0x55555555")
            a("s_mov_b32 vcc_hi, 0x55555555")
            for j in range(4):
                for d in range(2):
                    a(f"v_cndmask_b32_dpp v{T + 2 * j + d}, v{raw + 4 * j + d + 2}, v{raw + 4 * j + d}, vcc quad_perm:[1,0,3,2] row_mask:0xf bank_mask:0xf")
            a("s_mov_b32 vcc_lo, 0xaaaaaaaa")
            a("s_mov_b32 vcc_hi, 0xaaaaaaaa")
            for j in range(4):
                for d in range(2):
                    a(f"v_cndmask_b32_dpp v{raw + 4 * j + d + 2}, v{raw + 4 * j + d}, v{raw + 4 * j + d + 2}, vcc quad_perm:[1,0,3,2] row_mask:0xf bank_mask:0xf")
            for d in range(2):
                for jp in range(2):
                    x0 = T + 2 * (2 * jp) + d
                    x1 = T + 2 * (2 * jp + 1) + d
                    y0 = raw + 4 * (2 * jp) + d + 2
                    y1 = raw + 4 * (2 * jp + 1) + d + 2
                    a(f"v_perm_b32 v{dst + 4 * (2 * d) + jp}, v{x1}, v{x0}, s{sSELLO}")
                    a(f"v_perm_b32 v{dst + 4 * (2 * d + 1) + jp}, v{x1}, v{x0}, s{sSELHI}")
                    a(f"v_perm_b32 v{dst + 4 * (2 * d) + 2 + jp}, v{y1}, v{y0}, s{sSELLO}")
                    a(f"v_perm_b32 v{dst + 4 * (2 * d + 1) + 2 + jp}, v{y1}, v{y0}, s{sSELHI}")

    wo_loads(0)
    a(f"s_mov_b32 s{sC0}, 0xc038aa3b")
    a(f"s_mov_b32 s{sC0 + 1}, 0xc038aa3b")
    a(f"s_mov_b32 s{sTmp2}, 0x41f00000")
    for tf in range(8):
        b = ACC + 16 * tf
        N = WF + 16 * (tf % 2)
        S = XF + 8 * (tf % 2)
        for i in range(8):
            a(f"v_pk_mul_f32 {r2(b + 2 * i)}, {r2(b + 2 * i)}, s[{sC0}:{sC0 + 1}]")
        for i in range(16):
            a(f"v_min_f32 v{b + i}, s{sTmp2}, v{b + i}")
        for i in range(16):
            a(f"v_exp_f32 v{b + i}, v{b + i}")
        for i in range(8):
            a(f"v_pk_add_f32 {r2(N + 2 * i)}, {r2(b + 2 * i)}, s[{sC1}:{sC1 + 1}] neg_lo:[1,0] neg_hi:[1,0]")
        for i in range(8):
            a(f"v_pk_add_f32 {r2(b + 2 * i)}, {r2(b + 2 * i)}, s[{sC1}:{sC1 + 1}]")
        for i in range(16):
            a(f"v_rcp_f32 v{b + i}, v{b + i}")
        for i in range(8):
            a(f"v_pk_mul_f32 {r2(b + 2 * i)}, {r2(b + 2 * i)}, {r2(N + 2 * i)}")
        if tf >= 2:
            a("s_waitcnt lgkmcnt(2)")
        for r in range(4):
            for Fp in range(2):
                a(f"v_cvt_pk_f16_f32 v{S + 4 * (r // 2) + 2 * (r % 2) + Fp}, v{acc(tf, 2 * Fp, r)}, v{acc(tf, 2 * Fp + 1, r)}")
        for p in range(2):
            a(f"ds_write_b128 v{vZ}, {r4(S + 4 * p)} offset:{tf * 8192 + p * 1024}")
    a("s_waitcnt vmcnt(0) lgkmcnt(0)")
    wo_transform(0)
    wo_loads(1)
    a("s_waitcnt vmcnt(0)")
    wo_transform(1)
    g.ts(3)
    a("s_barrier")
    ZF = [160, 192]
    A2 = [128, 144]
    OS = [224, 232]

    def g2_mfma(s, kk):
        for F in range(4):
            d = A2[s % 2] + 4 * F
            c = "0" if kk == 0 else r4(d)
            a(f"v_mfma_f32_16x16x32_bf16 {r4(d)}, {r4(16 * kk + 4 * F)}, {r4(ZF[s % 2] + 4 * kk)}, {c}")

    def g2_out(s):
        o = OS[s % 2]
        A = A2[s % 2]
        for h in range(2):
            for rr in range(2):
                for Fp in range(2):
                    r = 2 * h + rr
                    a(f"v_cvt_pk_bf16_f32 v{o + 4 * h + 2 * rr + Fp}, v{A + 4 * (2 * Fp) + r}, v{A + 4 * (2 * Fp + 1) + r}")
        a(f"s_add_u32 s{sTmp}, s{sOutOff}, {s * 8192}")
        for h in range(2):
            a(f"buffer_store_dwordx4 {r4(o + 4 * h)}, v{vOut}, s[{sOUT}:{sOUT + 3}], s{sTmp} offen offset:{64 * h}")

    for s in range(8):
        a("s_barrier")
        if s == 0:
            g.ts(4)
        for kk in range(8):
            a(f"ds_read_b128 {r4(ZF[s % 2] + 4 * kk)}, v{vZr} offset:{s * 8192 + kk * 1024}")
        if s > 0:
            for kk in range(4, 8):
                g2_mfma(s - 1, kk)
        a("s_waitcnt lgkmcnt(6)")
        g2_mfma(s, 0)
        g2_mfma(s, 1)
        if s > 0:
            g2_out(s - 1)
        a("s_waitcnt lgkmcnt(4)")
        g2_mfma(s, 2)
        g2_mfma(s, 3)
        a("s_waitcnt lgkmcnt(0)")
    for kk in range(4, 8):
        g2_mfma(7, kk)
    a("s_nop 7")
    g2_out(7)
    g.ts(5)
    a("s_branch L_FIN")
    g.lab("L_BTAIL")
    a("s_barrier")
    T0 = 128
    for tf in range(8):
        for p in range(2):
            a(f"ds_read_b128 {r4(T0 + 8 * tf + 4 * p)}, v{vZ} offset:{tf * 8192 + p * 1024}")
    a(f"s_mov_b32 s{sC0}, 0xbfb8aa3b")
    a(f"s_mov_b32 s{sC0 + 1}, 0xbfb8aa3b")
    for tf in range(8):
        b = ACC + 16 * tf
        S = 192 + 8 * (tf % 2)
        for i in range(8):
            a(f"v_pk_mul_f32 {r2(b + 2 * i)}, {r2(b + 2 * i)}, s[{sC0}:{sC0 + 1}]")
        for i in range(16):
            a(f"v_exp_f32 v{b + i}, v{b + i}")
        for i in range(8):
            a(f"v_pk_add_f32 {r2(b + 2 * i)}, {r2(b + 2 * i)}, s[{sC1}:{sC1 + 1}]")
        for i in range(16):
            a(f"v_rcp_f32 v{b + i}, v{b + i}")
        if tf == 0:
            a("s_waitcnt lgkmcnt(0)")
        for F in range(4):
            for r in range(4):
                t = T0 + 8 * tf + 4 * (r // 2) + 2 * (r % 2) + F // 2
                a(f"v_fma_mix_f32 v{acc(tf, F, r)}, v{t}, v{acc(tf, F, r)}, 0 op_sel:[{F % 2},0,0] op_sel_hi:[1,0,0]")
        for r in range(4):
            for Fp in range(2):
                a(f"v_cvt_pk_bf16_f32 v{S + 4 * (r // 2) + 2 * (r % 2) + Fp}, v{acc(tf, 2 * Fp, r)}, v{acc(tf, 2 * Fp + 1, r)}")
        for p in range(2):
            a(f"ds_write_b128 v{vZ}, {r4(S + 4 * p)} offset:{tf * 8192 + p * 1024}")
        a("s_waitcnt lgkmcnt(0)")
        a("s_barrier")
    g.ts(5)
    g.lab("L_FIN")
    if timing:
        a("s_waitcnt lgkmcnt(0) vmcnt(0)")
        g.ts(6)
        a("s_waitcnt lgkmcnt(0)")
        a("s_cmp_lg_u32 s2, 7")
        a("s_cbranch_scc1 L_END")
        a(f"s_cmp_lg_u32 s{sWV}, 0")
        a("s_cbranch_scc1 L_END")
        a(f"s_mov_b32 s{sDBG + 2}, 256")
        a(f"s_mov_b32 s{sDBG + 3}, 0x00020000")
        a(f"s_lshl_b32 s{sTmp}, s{sROLE}, 5")
        a(f"v_mov_b32 v1, s{sTmp}")
        for i in range(1, 7):
            a(f"s_sub_u32 s{sTmp2}, s{sTS + 2 * i}, s{sTS}")
            a(f"v_mov_b32 v0, s{sTmp2}")
            a(f"buffer_store_dword v0, v1, s[{sDBG}:{sDBG + 3}], 0 offen offset:{4 * i}")
        a("s_waitcnt vmcnt(0)")
    g.lab("L_END")
    L.append("s_endpgm")
    L.append('.section .rodata,"a"')
    L.append(".p2align 6")
    L.append(f".amdhsa_kernel {KN}")
    L.append("  .amdhsa_next_free_vgpr 256")
    L.append("  .amdhsa_next_free_sgpr 102")
    L.append("  .amdhsa_accum_offset 256")
    L.append("  .amdhsa_group_segment_fixed_size 0")
    L.append("  .amdhsa_kernarg_size 48")
    L.append("  .amdhsa_user_sgpr_count 2")
    L.append("  .amdhsa_user_sgpr_kernarg_segment_ptr 1")
    L.append("  .amdhsa_system_sgpr_workgroup_id_x 1")
    L.append(".end_amdhsa_kernel")
    return "\n".join(L) + "\n"


if __name__ == "__main__":
    out = sys.argv[1] if len(sys.argv) > 1 else "standalone__autoregressive_conv_wavenet__speech.s"
    timing = "--timing" in sys.argv
    open(out, "w").write(gen(timing))
```

```python
import re

TRANS = ("v_exp_f32", "v_log_f32", "v_rcp_f32", "v_rsq_f32", "v_sqrt_f32", "v_sin_f32", "v_cos_f32")


def regs_of(tok):
    tok = tok.strip()
    tok = tok.lstrip("-").replace("|", "")
    m = re.fullmatch(r"([vs])\[(\d+):(\d+)\]", tok)
    if m:
        return m.group(1), set(range(int(m.group(2)), int(m.group(3)) + 1))
    m = re.fullmatch(r"([vs])(\d+)", tok)
    if m:
        return m.group(1), {int(m.group(2))}
    if tok == "vcc":
        return "s", {106, 107}
    if tok == "vcc_lo":
        return "s", {106}
    if tok == "vcc_hi":
        return "s", {107}
    return None, set()


class Ins:
    def __init__(self, text):
        self.text = text
        t = text.split(";")[0].strip()
        parts = t.split(None, 1)
        self.op = parts[0]
        rest = parts[1] if len(parts) > 1 else ""
        ops = [o.strip() for o in rest.split(",")] if rest else []
        toks = []
        self.mods = ""
        for i, o in enumerate(ops):
            sp = o.split(None, 1)
            toks.append(sp[0] if sp else "")
            if len(sp) > 1:
                self.mods += " " + sp[1]
        self.toks = toks
        op = self.op
        self.vw, self.vr, self.sw, self.sr = set(), set(), set(), set()
        self.kind = "other"
        self.cregs = set()
        self.abregs = set()

        def add(tok, w):
            k, r = regs_of(tok)
            if k == "v":
                (self.vw if w else self.vr).update(r)
            elif k == "s":
                (self.sw if w else self.sr).update(r)

        if op.startswith("v_mfma"):
            self.kind = "mfma"
            add(toks[0], True)
            for x in toks[1:4]:
                add(x, False)
            self.cregs = regs_of(toks[3])[1] if regs_of(toks[3])[0] == "v" else set()
            self.abregs = regs_of(toks[1])[1] | regs_of(toks[2])[1]
        elif op.startswith("v_"):
            self.kind = "valu"
            add(toks[0], True)
            for x in toks[1:]:
                add(x, False)
            if op.startswith("v_permlane") and "swap" in op:
                add(toks[1], True)
                add(toks[0], False)
            if op.startswith("v_writelane") or "dpp" in op or "row_" in self.mods or "quad_perm" in self.mods or op.startswith("v_fmac") or "d16" in op:
                add(toks[0], False)
            if op.startswith("v_cndmask") and len(toks) == 3:
                self.sr.update({106, 107})
        elif op.startswith("ds_"):
            self.kind = "ds"
            if op.startswith("ds_read") or "rtn" in op or op.startswith("ds_bpermute") or op.startswith("ds_permute"):
                add(toks[0], True)
                for x in toks[1:]:
                    add(x, False)
            else:
                for x in toks:
                    add(x, False)
        elif op.startswith("buffer_") or op.startswith("global_"):
            self.kind = "vmem"
            if "load" in op:
                add(toks[0], True)
                for x in toks[1:]:
                    add(x, False)
            else:
                for x in toks:
                    add(x, False)
        elif op.startswith("s_"):
            self.kind = "salu"
            if op in ("s_nop", "s_waitcnt", "s_barrier", "s_setprio", "s_sleep", "s_endpgm") or op.startswith("s_cbranch") or op == "s_branch":
                pass
            elif op.startswith("s_cmp"):
                for x in toks:
                    add(x, False)
            else:
                add(toks[0], True)
                for x in toks[1:]:
                    add(x, False)
        self.is_dpp = ("dpp" in op) or ("row_" in self.mods) or ("quad_perm" in self.mods)
        self.is_trans = any(op.startswith(t) for t in TRANS)
        self.states = 1
        if op == "s_nop":
            self.states = int(toks[0]) + 1


def need(p, c):
    n = 0
    if p.kind == "mfma":
        D = p.vw
        if c.kind == "mfma":
            if D & c.abregs:
                n = max(n, 8)
            if D & c.cregs and c.cregs != D:
                n = max(n, 6)
            if (D & c.vw) and not (c.cregs == D):
                n = max(n, 6)
        elif c.kind in ("valu", "ds", "vmem"):
            if D & (c.vr | c.vw):
                n = max(n, 8)
        if c.kind == "valu" and (p.cregs & c.vw):
            n = max(n, 3)
    if p.kind == "valu":
        if c.kind == "mfma" and (p.vw & c.vr):
            n = max(n, 2)
        if c.kind == "valu":
            if p.is_trans and not c.is_trans and (p.vw & c.vr):
                n = max(n, 1)
            if c.is_dpp and (p.vw & c.vr):
                n = max(n, 2)
            if c.op.startswith("v_permlane") and (p.vw & c.vr):
                n = max(n, 2)
            if (c.op.startswith("v_readfirstlane") or c.op.startswith("v_readlane")) and (p.vw & c.vr):
                n = max(n, 1)
            if p.sw & c.sr:
                n = max(n, 4 if (c.op.startswith("v_readlane") or c.op.startswith("v_writelane")) else 2)
            if ("op_sel" in p.mods or "sdwa" in p.op) and (p.vw & (c.vr | c.vw)):
                n = max(n, 1)
        if c.kind == "vmem" and (p.sw & c.sr):
            n = max(n, 5)
    if p.kind == "vmem" and "store" in p.op and ("x4" in p.op or "x3" in p.op):
        if c.kind in ("valu", "mfma", "ds", "vmem") and (p.vr & c.vw):
            n = max(n, 2)
    return n


class Asm:
    def __init__(self):
        self.L = []
        self.lq = 0
        self.ldone = 0
        self.vq = 0
        self.vdone = 0

    def a(self, s):
        self.L.append(s)

    def lab(self, s, safe=False):
        self.L.append(s + (":;safe" if safe else ":"))

    def lds(self, s):
        self.L.append(s)
        self.lq += 1
        return self.lq

    def vm(self, s):
        self.L.append(s)
        self.vq += 1
        return self.vq

    def wl(self, idx):
        if idx is None or idx <= self.ldone:
            return
        n = self.lq - idx
        n = min(n, 15)
        self.L.append(f"s_waitcnt lgkmcnt({n})")
        self.ldone = self.lq - n

    def wv(self, idx):
        if idx is None or idx <= self.vdone:
            return
        n = self.vq - idx
        n = min(n, 63)
        self.L.append(f"s_waitcnt vmcnt({n})")
        self.vdone = self.vq - n

    def wl0(self):
        self.L.append("s_waitcnt lgkmcnt(0)")
        self.ldone = self.lq

    def wv0(self):
        self.L.append("s_waitcnt vmcnt(0)")
        self.vdone = self.vq

    def reset_counts(self):
        self.ldone = self.lq
        self.vdone = self.vq

    def finish(self):
        out = []
        hist = []
        for line in self.L:
            s = line.strip()
            if s.endswith(":;safe"):
                out.append(s[:-5])
                hist = []
                continue
            if s.endswith(":") or s.startswith(".") or s.startswith(";") or not s:
                out.append(line)
                if s.endswith(":"):
                    out.append("    s_nop 7")
                    hist = []
                continue
            c = Ins(s)
            dist = 0
            req = 0
            for p in reversed(hist):
                n = need(p, c)
                if n > dist:
                    req = max(req, n - dist)
                dist += p.states
                if dist >= 8:
                    break
            if req > 0:
                nop = Ins(f"s_nop {req - 1}")
                out.append(f"    s_nop {req - 1}")
                hist.append(nop)
            out.append("    " + s)
            hist.append(c)
            hist = hist[-12:]
        return out
```

```python
import sys, struct, math
from asmlib import Asm

KN = "standalone__autoregressive_conv_wavenet__speech_kernel"
PN = "wn_prep_kernel"
HEADER = """; Kernarg layout for this problem (48 bytes, ptrs only, base s[0:1]):
"""

USTR = 16640
WO_OFF = 0x210000
INBOX = 0x400000
TS_OFF = 0xC00000
WS_SIZE = 0xC40000
REG = 8704
RING = 16 * REG
LDS = RING + 3 * 8192
SYNC = RING + 16384

UB = 128
VF = 192
TA = 208
BC = 216
TD = 224
vVe, vVo, vTr0, vTr1, vVwR, vVw2, vU = 240, 241, 242, 243, 244, 245, 246
vL16 = 247
vN, vG = 248, 249
vT = [250, 251, 252, 253, 254, 255]

sX, sW, sWO, sOUT, sWS, sDBG = 4, 8, 12, 16, 20, 24
sWAVE, sH, sP, sWV = 28, 29, 30, 31
sPTR = 32
sT = [44, 45, 46, 47, 48, 49, 50, 51]
sSubA, sSubB = 52, 53
sEX = 54
sK = 56
sTS = 64

BT = [
    [-1, 0, 5.25, 0, -5.25, 0, 1, 0],
    [0, 1, 1, -4.25, -4.25, 1, 1, 0],
    [0, -1, 1, 4.25, -4.25, -1, 1, 0],
    [0, 0.5, 0.25, -2.5, -1.25, 2, 1, 0],
    [0, -0.5, 0.25, 2.5, -1.25, -2, 1, 0],
    [0, 2, 4, -2.5, -5, 0.5, 1, 0],
    [0, -2, 4, 2.5, -5, -0.5, 1, 0],
    [0, -1, 0, 5.25, 0, -5.25, 0, 1]]
PTS = [[3, 4, 5, 6], [1, 2, 0, 7]]


def fbits(f):
    return struct.unpack("<I", struct.pack("<f", f))[0]


def r4(b):
    return f"v[{b}:{b + 3}]"


def r2(b):
    return f"v[{b}:{b + 1}]"


def srd(b):
    return f"s[{b}:{b + 3}]"


def acc(s, hf, QG, fg):
    return (((s * 2 + hf) * 2 + QG) * 2 + fg) * 4


def ureg(b, p, fg):
    return UB + b * 32 + (p * 2 + fg) * 4


class LdsBase:
    def __init__(self, g, reg, base):
        self.g, self.reg, self.base = g, reg, base

    def off(self, target):
        d = target - self.base
        if d < 0 or d > 65535:
            self.g.a(f"v_add_u32 v{self.reg}, {(target - self.base) & 0xffffffff}, v{self.reg}")
            self.base = target
            d = 0
        return d


class Gen(Asm):
    def __init__(self, timing):
        super().__init__()
        self.timing = timing

    def ts(self, i):
        if self.timing:
            self.a(f"s_memtime s[{sTS + 2 * i}:{sTS + 2 * i + 1}]")


def mk_srd(g, s, p, size):
    g.a(f"s_mov_b32 s{s}, s{p}")
    g.a(f"s_mov_b32 s{s + 1}, s{p + 1}")
    g.a(f"s_mov_b32 s{s + 2}, {size}")
    g.a(f"s_mov_b32 s{s + 3}, 0x00020000")


def wave_max(g, v):
    for m in ("row_shr:1", "row_shr:2", "row_shr:4", "row_shr:8"):
        g.a(f"v_max_u32_dpp v{v}, v{v}, v{v} {m} row_mask:0xf bank_mask:0xf bound_ctrl:0")
    g.a(f"v_max_u32_dpp v{v}, v{v}, v{v} row_bcast:15 row_mask:0xa bank_mask:0xf")
    g.a(f"v_max_u32_dpp v{v}, v{v}, v{v} row_bcast:31 row_mask:0xc bank_mask:0xf")


def fold_max(g, mp, mn, t):
    g.a(f"v_and_b32 v{mn}, 0x7fff7fff, v{mn}")
    g.a(f"v_pk_max_u16 v{mp}, v{mp}, v{mn}")
    g.a(f"v_lshrrev_b32 v{t}, 16, v{mp}")
    g.a(f"v_and_b32 v{mp}, 0xffff, v{mp}")
    g.a(f"v_max_u32 v{mp}, v{mp}, v{t}")


def common_head(g, nwg):
    a = g.a
    a(f"s_cmp_ge_u32 s2, {nwg}")
    a("s_cbranch_scc1 L_END" + g.sfx)
    g.ts(0)
    a(f"s_load_dwordx4 s[{sPTR}:{sPTR + 3}], s[0:1], 0")
    a(f"s_load_dwordx4 s[{sPTR + 4}:{sPTR + 7}], s[0:1], 16")
    a(f"s_load_dwordx4 s[{sPTR + 8}:{sPTR + 11}], s[0:1], 32")
    a(f"v_lshrrev_b32 v{vT[0]}, 6, v0")
    a(f"v_and_b32 v{vT[1]}, 63, v0")
    a(f"v_readfirstlane_b32 s{sWAVE}, v{vT[0]}")
    a(f"v_lshlrev_b32 v{vL16}, 4, v{vT[1]}")
    a(f"v_and_b32 v{vN}, 15, v0")
    a(f"v_bfe_u32 v{vG}, v0, 4, 2")
    a(f"s_and_b32 s{sWV}, s{sWAVE}, 3")
    a("s_waitcnt lgkmcnt(0)")
    mk_srd(g, sX, sPTR, 16384000)
    mk_srd(g, sW, sPTR + 2, 1310720)
    mk_srd(g, sWO, sPTR + 4, 131072)
    mk_srd(g, sOUT, sPTR + 6, 16384000)
    mk_srd(g, sDBG, sPTR + 8, 256)
    mk_srd(g, sWS, sPTR + 10, WS_SIZE)
```

```python
from g2c import *

sSC = 55
sUO = 56
sWoB = 32
sIN = 36
sPB = 37
sOB = 38
sMASK = 39
sC30 = 40
vC = [216, 217]
vC0 = [218, 219]
vCI = [220, 221]
vZW = 222
vOA = 223
vSC = [250, 251]


class Filler:
    def __init__(self, g):
        self.g = g
        self.q = []

    def add(self, lst):
        self.q += lst

    def emit(self, n):
        for _ in range(min(n, len(self.q))):
            self.g.a(self.q.pop(0))

    def flush(self):
        self.emit(len(self.q))


def mid_ops(hf, tmps):
    ops = []
    i = 0
    for QG in range(2):
        for fg in range(2):
            for r in range(4):
                a, b, c, d = [acc(s, hf, QG, fg) + r for s in range(4)]
                T0, T1 = tmps[(2 * i) % len(tmps)], tmps[(2 * i + 1) % len(tmps)]
                i += 1
                ops += [f"v_add_f32 v{T0}, v{a}, v{b}",
                        f"v_sub_f32 v{T1}, v{a}, v{b}",
                        f"v_add_f32 v{a}, v{c}, v{d}",
                        f"v_sub_f32 v{b}, v{c}, v{d}",
                        f"v_fma_f32 v{c}, -4.0, v{a}, v{T0}",
                        f"v_sub_f32 v{d}, v{T1}, v{b}",
                        f"v_add_f32 v{T0}, v{T0}, v{a}",
                        f"v_fmac_f32 v{T1}, 4.0, v{b}",
                        f"v_fma_f32 v{a}, 0.5, v{T1}, v{T0}",
                        f"v_fma_f32 v{b}, -0.5, v{T1}, v{T0}"]
    return ops


SETJ = [2, 1, 0, 3]
JSET = [2, 1, 0, 3]


def zreg(hf, QG, j):
    return acc(JSET[j & ~1], hf, QG, 1) + 2 * (j & 1)


def tail_ops(hf, QG, tmps, mask):
    ops = []
    i = 0
    for fg in range(2):
        for r in range(4):
            a, b, c, d = [acc(s, hf, QG, fg) + r for s in range(4)]
            T = tmps[i % len(tmps)]
            i += 1
            ops += [f"v_mul_f32 v{T}, v{vC[fg]}, v{a}",
                    f"v_fma_f32 v{a}, v{vC[fg]}, v{b}, v{T}",
                    f"v_fma_f32 v{b}, -v{vC[fg]}, v{b}, v{T}",
                    f"v_fma_f32 v{c}, v{vC0[fg]}, v{c}, v{a}",
                    f"v_fma_f32 v{d}, v{vCI[fg]}, v{d}, v{b}"]
    for j in range(4):
        s = JSET[j]
        F = acc(s, hf, QG, 0)
        G = acc(s, hf, QG, 1)
        for r in range(4):
            ops.append(f"v_min_f32 v{F + r}, s{sC30}, v{F + r}")
        for r in range(4):
            ops.append(f"v_exp_f32 v{F + r}, v{F + r}")
            ops.append(f"v_exp_f32 v{G + r}, v{G + r}")
        for r in range(4):
            T = tmps[r % len(tmps)]
            ops.append(f"v_add_f32 v{T}, 1.0, v{F + r}")
            ops.append(f"v_sub_f32 v{F + r}, 1.0, v{F + r}")
            ops.append(f"v_fma_f32 v{G + r}, v{T}, v{G + r}, v{T}")
        for r in range(4):
            ops.append(f"v_rcp_f32 v{G + r}, v{G + r}")
        for r in range(4):
            ops.append(f"v_mul_f32 v{F + r}, v{F + r}, v{G + r}")
        Z = zreg(hf, QG, j)
        ops.append(f"v_cvt_pk_bf16_f32 v{Z}, v{F}, v{F + 1}")
        ops.append(f"v_cvt_pk_bf16_f32 v{Z + 1}, v{F + 2}, v{F + 3}")
        if mask:
            ops.append(f"v_and_b32 v{Z}, s{sMASK}, v{Z}")
            ops.append(f"v_and_b32 v{Z + 1}, s{sMASK}, v{Z + 1}")
    return ops


def gen_main_kernel(g):
    a = g.a
    g.sfx = ""
    g.L.append(f".globl {KN}")
    g.L.append(".p2align 8")
    g.L.append(f".type {KN},@function")
    g.lab(KN, safe=True)
    a(f"s_lshr_b32 s{sT[0]}, s2, 4")
    a(f"s_lshl_b32 s{sT[0]}, s{sT[0]}, 3")
    a(f"s_and_b32 s{sT[1]}, s2, 7")
    a(f"s_add_u32 s{sP}, s{sT[0]}, s{sT[1]}")
    a(f"s_cmp_ge_u32 s{sP}, 125")
    a("s_cbranch_scc1 L_END")
    common_head(g, 256)
    lane = vT[1]
    a(f"s_bfe_u32 s{sH}, s2, 0x10003")
    a(f"s_lshl_b32 s{sT[0]}, s{sP}, 1")
    a(f"s_add_u32 s{sSubB}, s{sT[0]}, s{sH}")
    a(f"s_xor_b32 s{sSubA}, s{sSubB}, 1")
    a(f"s_cmp_lt_u32 s{sWAVE}, 4")
    a(f"s_cselect_b32 s{sT[0]}, s{sSubA}, s{sSubB}")
    a(f"s_cselect_b32 s{sT[4]}, 0, {REG}")
    X0, X1, X2 = 100, 101, 102
    a(f"v_bfe_u32 v{X0}, v{lane}, 2, 1")
    a(f"v_lshrrev_b32 v{X1}, 3, v{lane}")
    a(f"v_and_b32 v{X2}, 3, v{lane}")
    a(f"v_lshlrev_b32 v{X2}, 4, v{X2}")
    vo, voH, xw0, xw1 = 104, 105, 106, 107
    a(f"v_lshl_add_u32 v{vo}, v{X0}, 9, v{X2}")
    a(f"v_lshl_add_u32 v{vo}, v{X1}, 6, v{vo}")
    a(f"s_lshl_b32 s{sT[1]}, s{sT[0]}, 16")
    a(f"s_lshl_b32 s{sT[2]}, s{sWV}, 10")
    a(f"s_add_u32 s{sT[1]}, s{sT[1]}, s{sT[2]}")
    a(f"s_sub_u32 s{sT[2]}, s{sT[1]}, 4096")
    a(f"s_cmp_eq_u32 s{sT[0]}, 0")
    a(f"s_cselect_b32 s{sT[2]}, 0x80000000, s{sT[2]}")
    a(f"s_cmp_eq_u32 s{sT[0]}, 125")
    a(f"s_cselect_b32 s{sT[2]}, 0x80000000, s{sT[2]}")
    a(f"v_add_u32 v{voH}, s{sT[2]}, v{vo}")
    a(f"v_add_u32 v{vo}, s{sT[1]}, v{vo}")
    xid = []
    xid.append(g.vm(f"buffer_load_dwordx4 {r4(0)}, v{voH}, {srd(sX)}, 0 offen"))
    a(f"s_mov_b32 s{sT[3]}, 0")
    for gm in range(1, 17):
        xid.append(g.vm(f"buffer_load_dwordx4 {r4(4 * gm)}, v{vo}, {srd(sX)}, s{sT[3]} offen"))
        if gm < 16:
            a(f"s_add_u32 s{sT[3]}, s{sT[3]}, 4096")
    for fg in range(2):
        for q in range(4):
            a(f"s_mov_b32 s{sUO + fg * 4 + q}, {fg * 64 * USTR + q * 4096}")
    a(f"s_lshl_b32 s{sT[1]}, s{sH}, 5")
    a(f"s_lshl_b32 s{sT[2]}, s{sWAVE}, 2")
    a(f"s_add_u32 s{sT[1]}, s{sT[1]}, s{sT[2]}")
    a(f"s_mov_b32 s{sT[2]}, {USTR}")
    t0, t1 = 108, 109
    a(f"v_lshrrev_b32 v{t0}, 2, v{vN}")
    a(f"v_add_u32 v{t0}, s{sT[1]}, v{t0}")
    a(f"v_mul_lo_u32 v{vU}, v{t0}, s{sT[2]}")
    a(f"v_lshl_add_u32 v{vU}, v{vG}, 6, v{vU}")
    a(f"v_and_b32 v{t0}, 3, v{vN}")
    a(f"v_lshl_add_u32 v{vU}, v{t0}, 4, v{vU}")
    uid = {}

    def uload(kk, p, fg):
        i = kk * 4 + p
        uid[(kk, p, fg)] = g.vm(f"buffer_load_dwordx4 {r4(ureg(kk % 2, p, fg))}, v{vU}, {srd(sWS)}, s{sUO + fg * 4 + i // 16} offen offset:{(i % 16) * 256} sc1")

    for kk in range(2):
        for p in range(4):
            for fg in range(2):
                uload(kk, p, fg)
    a(f"v_add_u32 v{t0}, s{sT[1]}, v{vG}")
    a(f"v_mul_lo_u32 v{t0}, v{t0}, s{sT[2]}")
    a(f"v_add_u32 v{t0}, 0x4000, v{t0}")
    a(f"s_mov_b32 s{sT[2]}, {2 * REG}")
    a(f"v_mul_lo_u32 v{xw0}, v{X1}, s{sT[2]}")
    a(f"v_lshl_add_u32 v{xw0}, v{X0}, 6, v{xw0}")
    a(f"v_add_u32 v{xw0}, v{xw0}, v{X2}")
    a(f"s_lshl_b32 s{sT[2]}, s{sWV}, 7")
    a(f"s_add_u32 s{sT[2]}, s{sT[2]}, s{sT[4]}")
    a(f"v_add_u32 v{xw0}, s{sT[2]}, v{xw0}")
    a(f"v_xor_b32 v{xw1}, 32, v{xw0}")
    a(f"s_lshl_b32 s{sT[2]}, s{sWAVE}, 14")
    a(f"s_lshl_b32 s{sT[3]}, s{sH}, 13")
    a(f"s_add_u32 s{sT[2]}, s{sT[2]}, {WO_OFF}")
    a(f"s_add_u32 s{sWoB}, s{sT[2]}, s{sT[3]}")
    a(f"s_add_u32 s{sWoB + 1}, s{sWoB}, 4096")
    a(f"s_xor_b32 s{sWoB + 2}, s{sWoB}, 8192")
    a(f"s_xor_b32 s{sWoB + 3}, s{sWoB + 1}, 8192")
    a(f"s_lshl_b32 s{sT[2]}, s2, 15")
    a(f"s_lshl_b32 s{sT[3]}, s{sWAVE}, 12")
    a(f"s_add_u32 s{sT[2]}, s{sT[2]}, s{sT[3]}")
    a(f"s_add_u32 s{sIN}, s{sT[2]}, {INBOX}")
    a(f"s_xor_b32 s{sPB}, s{sIN}, {8 << 15}")
    a(f"s_lshl_b32 s{sOB}, s{sSubB}, 16")
    a(f"s_mov_b32 s{sMASK}, 0xbfffbfff")
    a(f"s_mov_b32 s{sC30}, 0x{fbits(30.0):08x}")
    LN = 110
    a(f"v_mov_b32 v{LN}, v{lane}")
    scid = []
    for fg in range(2):
        scid.append(g.vm(f"buffer_load_dword v{vSC[fg]}, v{t0}, {srd(sWS)}, s{sUO + fg * 4} offen sc1"))
    TB = 112
    a(f"v_mov_b32 v{TB}, 0")
    for st in range(2):
        for p4 in range(4):
            for gq in range(2):
                row = BT[PTS[st][p4]]
                w = 0
                for jj in range(4):
                    w |= (int(row[4 * gq + jj] * 4) & 0xff) << (8 * jj)
                a(f"s_mov_b32 s{sT[2]}, 0x{w:08x}")
                a(f"v_writelane_b32 v{TB}, s{sT[2]}, {st * 8 + p4 * 2 + gq}")
    q1, gq, idx, shv = 113, 114, 115, 116
    a(f"v_bfe_u32 v{q1}, v{vN}, 1, 1")
    a(f"v_sub_u32 v{gq}, v{vG}, v{q1}")
    a(f"v_lshrrev_b32 v{idx}, 2, v{vN}")
    a(f"v_lshl_add_u32 v{idx}, v{idx}, 1, v{gq}")
    a(f"v_lshlrev_b32 v{idx}, 2, v{idx}")
    a(f"v_cmp_lt_u32 vcc, v{gq}, 2")
    a(f"v_mov_b32 v{q1}, 192")
    a(f"v_cndmask_b32 v{idx}, v{q1}, v{idx}, vcc")
    bp = []
    for st in range(2):
        bp.append(g.lds(f"ds_bpermute_b32 v{118 + st}, v{idx}, v{TB} offset:{st * 32}"))
    a(f"v_and_b32 v{shv}, 1, v{vN}")
    a(f"v_lshlrev_b32 v{shv}, 4, v{shv}")
    a(f"v_xor_b32 v{shv}, 16, v{shv}")
    a(f"v_add_u32 v{vVe}, {RING}, v{vL16}")
    a(f"v_xor_b32 v{vVo}, 64, v{vVe}")
    a(f"v_min_u32 v{t0}, 2, v{vG}")
    a(f"v_lshrrev_b32 v{t1}, 2, v{vN}")
    a(f"v_lshl_add_u32 v{t1}, v{t0}, 3, v{t1}")
    a(f"s_lshl_b32 s{sT[2]}, s{sWAVE}, 4")
    a(f"v_add_u32 v{t1}, s{sT[2]}, v{t1}")
    a(f"v_lshlrev_b32 v{vTr0}, 6, v{t1}")
    a(f"v_and_b32 v{t0}, 1, v{t0}")
    a(f"v_lshl_add_u32 v{vTr0}, v{t0}, 5, v{vTr0}")
    a(f"v_and_b32 v{t0}, 3, v{vN}")
    a(f"v_lshl_add_u32 v{vTr0}, v{t0}, 3, v{vTr0}")
    a(f"v_xor_b32 v{vTr1}, 32, v{vTr0}")
    a(f"v_lshrrev_b32 v{t1}, 2, v{vN}")
    a(f"v_lshlrev_b32 v{vVw2}, 11, v{t1}")
    a(f"v_lshl_add_u32 v{vVw2}, v{vG}, 8, v{vVw2}")
    a(f"s_lshl_b32 s{sT[2]}, s{sWV}, 2")
    a(f"v_add_u32 v{t0}, s{sT[2]}, v{t0}")
    a(f"v_and_b32 v{t1}, 1, v{t1}")
    a(f"v_lshlrev_b32 v{t1}, 2, v{t1}")
    a(f"v_xor_b32 v{t0}, v{t0}, v{t1}")
    a(f"v_lshl_add_u32 v{vVw2}, v{t0}, 4, v{vVw2}")
    a(f"s_lshr_b32 s{sT[2]}, s{sWAVE}, 2")
    a(f"s_lshl_b32 s{sT[2]}, s{sT[2]}, 10")
    a(f"v_add_u32 v{vVw2}, s{sT[2]}, v{vVw2}")
    a(f"v_add_u32 v{vVwR}, {RING}, v{vVw2}")
    bVe = LdsBase(g, vVe, RING)
    bVo = LdsBase(g, vVo, RING)
    bT0 = LdsBase(g, vTr0, 0)
    bT1 = LdsBase(g, vTr1, 0)
    bW2 = LdsBase(g, vVw2, 0)
    for st in range(2):
        g.wl(bp[st])
        for jj in range(4):
            a(f"v_bfe_i32 v{BC + st * 4 + jj}, v{118 + st}, {8 * jj}, 8")
            a(f"v_cvt_f32_i32 v{BC + st * 4 + jj}, v{BC + st * 4 + jj}")
    m0, m1 = 120, 121
    a(f"v_mov_b32 v{m0}, 0")
    a(f"v_mov_b32 v{m1}, 0")
    for gm in range(17):
        g.wv(xid[gm])
        g.lds(f"ds_write_b128 v{xw1 if gm & 1 else xw0}, {r4(4 * gm)} offset:{gm * 512}")
        for d in range(4):
            m = m0 if d % 2 == 0 else m1
            a(f"v_pk_maximum3_f16 v{m}, v{m}, v{4 * gm + d}, v{4 * gm + d} neg_lo:[0,0,1] neg_hi:[0,0,1]")
    a(f"v_pk_max_u16 v{m0}, v{m0}, v{m1}")
    a(f"v_lshrrev_b32 v{m1}, 16, v{m0}")
    a(f"v_and_b32 v{m0}, 0xffff, v{m0}")
    a(f"v_max_u32 v{m0}, v{m0}, v{m1}")
    wave_max(g, m0)
    a(f"v_readlane_b32 s{sT[0]}, v{m0}, 63")
    a(f"s_lshl_b32 s{sT[1]}, s{sWAVE}, 2")
    a(f"s_add_u32 s{sT[1]}, s{sT[1]}, {SYNC + 32}")
    a(f"v_mov_b32 v{m0}, s{sT[0]}")
    a(f"v_mov_b32 v{m1}, s{sT[1]}")
    g.lds(f"ds_write_b32 v{m1}, v{m0}")
    a(f"v_mov_b32 v{m1}, {SYNC + 32}")
    g.wl0()
    g.ts(1)
    a("s_barrier")
    i0 = g.lds(f"ds_read_b128 v[0:3], v{m1}")
    i1 = g.lds(f"ds_read_b128 v[4:7], v{m1} offset:16")

    def tr_reads(u, ta):
        ids = []
        for cb in range(2):
            bb = bT0 if cb == 0 else bT1
            for t in range(2):
                o = bb.off(u * REG + t * 256) if t == 0 else o + 256
                assert o + 256 < 65536
                ids.append(g.lds(f"ds_read_b64_tr_b16 {r2(ta + cb * 4 + 2 * t)}, v{bb.reg} offset:{o}"))
        return ids[-1]

    def prod_mfma(ta, td):
        for st in range(2):
            for cb in range(2):
                a(f"v_mfma_f32_16x16x32_bf16 {r4(td + (st * 2 + cb) * 4)}, {r4(ta + cb * 4)}, {r4(BC + st * 4)}, 0")

    def prod_cvt(td, st):
        for q in range(4):
            a(f"v_cvt_pk_f16_f32 v{td + st * 8 + q}, v{td + st * 8 + 2 * q}, v{td + st * 8 + 2 * q + 1}")

    def v1_write(u, td):
        return g.lds(f"ds_write_b128 v{vVwR}, {r4(td)} offset:{(u % 3) * 8192}")

    def v2_write(u, td):
        o = bW2.off(u * REG)
        return g.lds(f"ds_write_b128 v{vVw2}, {r4(td + 8)} offset:{o}")

    TA0, TD0 = 48, 16
    tr0 = tr_reads(0, TA0)
    tr1 = tr_reads(1, TA)
    g.wl(i1)
    a("v_max_u32 v0, v0, v1")
    a("v_max3_u32 v0, v0, v2, v3")
    a("v_max3_u32 v0, v0, v4, v5")
    a("v_max3_u32 v0, v0, v6, v7")
    a(f"v_readfirstlane_b32 s{sT[1]}, v0")
    a(f"s_bfe_u32 s{sT[1]}, s{sT[1]}, 0x80007")
    a(f"s_sub_i32 s{sEX}, 137, s{sT[1]}")
    a(f"s_max_i32 s{sEX}, s{sEX}, -60")
    a(f"s_min_i32 s{sEX}, s{sEX}, 60")
    a(f"s_add_i32 s{sT[1]}, s{sEX}, 125")
    a(f"s_lshl_b32 s{sSC}, s{sT[1]}, 23")
    for i in range(8):
        a(f"v_mul_f32 v{BC + i}, s{sSC}, v{BC + i}")
    for i in range(8):
        a(f"v_lshrrev_b32 v{BC + i}, v{shv}, v{BC + i}")
    g.wl(tr0)
    prod_mfma(TA0, TD0)
    g.wl(tr1)
    prod_mfma(TA, TD)
    prod_cvt(TD0, 0)
    v1_write(0, TD0)
    prod_cvt(TD, 0)
    v1_write(1, TD)
    prod_cvt(TD0, 1)
    prod_cvt(TD, 1)
    a(f"s_sub_i32 s{sT[1]}, 127, s{sEX}")
    a(f"s_lshl_b32 s{sSC}, s{sT[1]}, 23")
    g.wl0()
    g.ts(2)

    order = [(ph, u) for ph in range(2) for u in range(16)]
    frags = [(ph, u, k) for (ph, u) in order for k in range(8)]
    fid = {}

    def vread(F):
        if F >= len(frags):
            return
        ph, u, k = frags[F]
        p = k // 2
        bb = bVo if p & 1 else bVe
        base = RING + (u % 3) * 8192 if ph == 0 else u * REG
        o = bb.off(base + k * 1024)
        fid[F] = g.lds(f"ds_read_b128 {r4(VF + (F % 4) * 4)}, v{bb.reg} offset:{o}")

    fill = Filler(g)
    woid = {}
    for si, (ph, u) in enumerate(order):
        ks, hf = u // 2, u % 2
        kk = ph * 8 + ks
        prod = ph == 0 and u + 2 < 16
        if ph == 0:
            a("s_barrier")
            if u == 0:
                for F in range(4):
                    vread(F)
                v2_write(0, TD0)
            if u + 1 < 16:
                v2_write(u + 1, TD)
            if prod:
                trid = tr_reads(u + 2, TA)
        if ph == 0 and u == 15:
            fill.add(mid_ops(0, [TD + i for i in range(8)]))
        if ph == 1 and u == 0:
            fill.add(mid_ops(1, [TD + i for i in range(8)]))
            g.ts(3)
        for k in range(8):
            F = si * 8 + k
            p, QG = k // 2, k % 2
            g.wl(fid[F])
            for fg in range(2):
                g.wv(uid[(kk, p, fg)])
                A = acc(p, hf, QG, fg)
                C = "0" if kk == 0 else r4(A)
                a(f"v_mfma_f32_16x16x32_f16 {r4(A)}, {r4(ureg(kk % 2, p, fg))}, {r4(VF + (F % 4) * 4)}, {C}")
                fill.emit(10)
            vread(F + 4)
            if hf == 1 and QG == 1:
                for fg in range(2):
                    if kk + 2 < 16:
                        uload(kk + 2, p, fg)
                    else:
                        kl = (kk - 14) * 4 + p
                        woid[(kl, fg)] = g.vm(f"buffer_load_dwordx4 {r4(ureg(kk % 2, p, fg))}, v{vL16}, {srd(sWS)}, s{sWoB + kl // 2} offen offset:{(kl % 2) * 2048 + fg * 1024} sc1")
            if prod and k == 1:
                g.wl(trid)
                prod_mfma(TA, TD)
            if prod and k == 3:
                prod_cvt(TD, 0)
                wid = v1_write(u + 2, TD)
                prod_cvt(TD, 1)
        fill.flush()
        if ph == 0 and u < 15:
            g.wl(g.lq - 4)
        if ph == 0 and u == 14:
            g.wv(scid[1])
            for fg in range(2):
                a(f"v_mul_f32 v{vC[fg]}, s{sSC}, v{vSC[fg]}")
                a(f"v_mul_f32 v{vC0[fg]}, 0xbfc00000, v{vC[fg]}")
                a(f"v_mul_f32 v{vCI[fg]}, 0x40400000, v{vC[fg]}")
            a(f"v_lshrrev_b32 v{vT[2]}, 1, v{vG}")
            a(f"v_lshlrev_b32 v{vZW}, 8, v{vT[2]}")
            a(f"v_lshl_add_u32 v{vZW}, v{vN}, 4, v{vZW}")
            a(f"v_and_b32 v{vT[2]}, 1, v{vG}")
            a(f"v_lshl_add_u32 v{vZW}, v{vT[2]}, 3, v{vZW}")
            a(f"s_lshl_b32 s{sT[0]}, s{sWAVE}, 9")
            a(f"v_add_u32 v{vZW}, s{sT[0]}, v{vZW}")
            a(f"v_lshrrev_b32 v{vT[2]}, 1, v{vN}")
            a(f"v_lshlrev_b32 v{vOA}, 12, v{vT[2]}")
            a(f"v_and_b32 v{vT[2]}, 1, v{vN}")
            a(f"v_lshl_add_u32 v{vOA}, v{vT[2]}, 9, v{vOA}")
            a(f"v_lshl_add_u32 v{vOA}, v{vG}, 4, v{vOA}")
            a(f"s_lshl_b32 s{sT[0]}, s{sWAVE}, 6")
            a(f"s_add_u32 s{sT[0]}, s{sT[0]}, s{sOB}")
            a(f"v_add_u32 v{vOA}, s{sT[0]}, v{vOA}")
    g.ts(4)

    tmps = [TD + i for i in range(8)]
    for QG in range(2):
        for op in tail_ops(0, QG, tmps, True):
            a(op)
        for jp in range(2):
            g.vm(f"buffer_store_dwordx4 {r4(zreg(0, QG, 2 * jp))}, v{vL16}, {srd(sWS)}, s{sPB} offen offset:{(QG * 2 + jp) * 1024} sc1")
    g.ts(5)
    for QG in range(2):
        for op in tail_ops(1, QG, tmps, False):
            a(op)
    g.ts(6)
    a("s_barrier")
    for QG in range(2):
        for jp in range(2):
            RG = QG * 4 + 2 * jp
            z = zreg(1, QG, 2 * jp)
            g.lds(f"ds_write2st64_b64 v{vZW}, {r2(z)}, {r2(z + 2)} offset0:{RG * 16} offset1:{RG * 16 + 16}")
    g.wl0()
    a("s_barrier")

    NS = 8
    slots = [VF + 4 * i for i in range(4)] + [TD + 4 * i for i in range(4)]

    def oacc(RG, F):
        return (RG // 2) * 32 + (RG % 2) * 8 + F * 4

    def gemm2(kls):
        seq = [(kl, RG) for kl in kls for RG in range(8)]
        ids = {}

        def rd(i):
            if i < len(seq):
                kl, RG = seq[i]
                ids[i] = g.lds(f"ds_read_b128 {r4(slots[i % NS])}, v{vL16} offset:{(RG * 8 + kl) * 1024}")
        for i in range(NS):
            rd(i)
        for i, (kl, RG) in enumerate(seq):
            g.wl(ids[i])
            for F in range(2):
                g.wv(woid[(kl, F)])
                O = oacc(RG, F)
                C = "0" if kl == 0 else r4(O)
                a(f"v_mfma_f32_16x16x32_bf16 {r4(O)}, {r4(ureg(kl // 4, kl % 4, F))}, {r4(slots[i % NS])}, {C}")
            rd(i + NS)

    gemm2(range(4))
    g.ts(7)
    IB = 16
    a(f"s_mov_b32 s{sT[0]}, 0")
    g.wv0()
    g.lab("L_POLL")
    for pc in range(4):
        a(f"buffer_load_dwordx4 {r4(IB + 4 * pc)}, v{vL16}, {srd(sWS)}, s{sIN} offen offset:{pc * 1024} sc1")
    a("s_waitcnt vmcnt(0)")
    T = TA
    a(f"v_or3_b32 v{T}, v{IB}, v{IB + 1}, v{IB + 2}")
    for i in range(3, 15, 2):
        a(f"v_or3_b32 v{T}, v{T}, v{IB + i}, v{IB + i + 1}")
    a(f"v_or_b32 v{T}, v{T}, v{IB + 15}")
    a(f"v_and_b32 v{T}, 0x40004000, v{T}")
    a(f"v_cmp_ne_u32 vcc, 0, v{T}")
    a(f"s_add_u32 s{sT[0]}, s{sT[0]}, 1")
    a(f"s_cmp_gt_u32 s{sT[0]}, 20000")
    a("s_cbranch_scc1 L_POLLED")
    a("s_cbranch_vccnz L_POLL")
    g.lab("L_POLLED")
    g.reset_counts()
    for pc in range(4):
        RG = (pc // 2) * 4 + 2 * (pc % 2)
        z = IB + 4 * pc
        g.lds(f"ds_write2st64_b64 v{vZW}, {r2(z)}, {r2(z + 2)} offset0:{RG * 16 + 8} offset1:{RG * 16 + 24}")
    g.wl0()
    g.ts(8)
    a("s_barrier")
    gemm2(range(4, 8))
    g.ts(9)
    for RG in range(8):
        QG, j = RG // 4, RG % 4
        O = oacc(RG, 0)
        for q in range(4):
            a(f"v_cvt_pk_bf16_f32 v{O + q}, v{O + 2 * q}, v{O + 2 * q + 1}")
        if j == 0:
            a(f"s_mov_b32 s{sT[0]}, {QG * 32768}")
        g.vm(f"buffer_store_dwordx4 {r4(O)}, v{vOA}, {srd(sOUT)}, s{sT[0]} offen offset:{j * 1024}")
    if g.timing:
        g.wv0()
        g.ts(10)
        a("s_waitcnt lgkmcnt(0)")
        a(f"s_lshl_b32 s{sT[0]}, s2, 10")
        a(f"s_lshl_b32 s{sT[1]}, s{sWAVE}, 7")
        a(f"s_add_u32 s{sT[0]}, s{sT[0]}, s{sT[1]}")
        a(f"s_add_u32 s{sT[0]}, s{sT[0]}, {TS_OFF}")
        a("v_mov_b32 v0, 0")
        for i in range(16):
            a(f"v_writelane_b32 v0, s{sTS + 2 * i}, {i}")
        a(f"v_lshrrev_b32 v1, 2, v{vL16}")
        a("s_mov_b64 exec, 0xffff")
        a(f"buffer_store_dword v0, v1, {srd(sWS)}, s{sT[0]} offen")
    g.lab("L_END", safe=True)
    a("s_endpgm")
```

```python
from g2c import *
from gen2_main import gen_main_kernel


def emit_prep_loads(g):
    a = g.a
    a(f"s_lshl_b32 s{sT[0]}, s2, 3")
    a(f"v_lshlrev_b32 v{vT[2]}, 10, v0")
    a(f"v_add_u32 v{vT[2]}, s{sT[0]}, v{vT[2]}")
    for t in range(5):
        a(f"s_mov_b32 s{sT[1]}, {t * 262144}")
        g.vm(f"buffer_load_dwordx2 {r2(2 * t)}, v{vT[2]}, {srd(sW)}, s{sT[1]} offen")


def emit_prep_u(g):
    a = g.a
    sfx = g.sfx
    mp, mn = 10, 11
    g.wv0()
    a(f"v_pk_max_i16 v{mp}, v0, 0")
    a(f"v_pk_max_u16 v{mn}, v0, v1")
    a(f"v_pk_max_i16 v{mp}, v{mp}, v1")
    for d in range(2, 10):
        a(f"v_pk_max_i16 v{mp}, v{mp}, v{d}")
        a(f"v_pk_max_u16 v{mn}, v{mn}, v{d}")
    fold_max(g, mp, mn, 12)
    wave_max(g, mp)
    a(f"v_readlane_b32 s{sT[0]}, v{mp}, 63")
    a(f"s_or_b32 s{sT[0]}, s{sT[0]}, 0x80000000")
    a(f"s_lshl_b32 s{sT[1]}, s{sWV}, 2")
    a(f"s_add_u32 s{sT[1]}, s{sT[1]}, {SYNC}")
    a(f"v_mov_b32 v12, s{sT[0]}")
    a(f"v_mov_b32 v13, s{sT[1]}")
    a(f"ds_write_b32 v13, v12")
    for r in range(5):
        t = 4 - r
        for hw in range(2):
            a(f"v_lshlrev_b32 v{16 + 4 * r + 2 * hw}, 16, v{2 * t + hw}")
            a(f"v_and_b32 v{16 + 4 * r + 2 * hw + 1}, 0xffff0000, v{2 * t + hw}")
    lane = vT[1]
    a(f"v_and_b32 v{lane}, 63, v{vT[3]}")
    a(f"v_lshrrev_b32 v14, 5, v{lane}")
    a(f"v_lshlrev_b32 v14, 10, v14")
    a(f"v_bfe_u32 v15, v{lane}, 2, 2")
    a(f"v_lshl_add_u32 v14, v15, 6, v14")
    a(f"v_and_b32 v15, 3, v{lane}")
    a(f"v_lshl_add_u32 v14, v15, 1, v14")
    a(f"v_bfe_u32 v15, v{lane}, 4, 1")
    a(f"v_lshl_add_u32 v14, v15, 3, v14")
    a(f"s_lshl_b32 s{sT[2]}, s{sWV}, 12")
    a(f"s_add_u32 s{sT[2]}, s{sT[2]}, {RING}")
    a(f"v_add_u32 v14, s{sT[2]}, v14")
    a(f"v_add_u32 v15, s{sT[2]}, v{vL16}")
    a(f"v_mov_b32 v13, {SYNC}")
    a(f"s_mov_b32 s{sT[3]}, 0")
    g.lab("L_PSPIN" + sfx)
    a(f"ds_read_b128 v[8:11], v13")
    a("s_waitcnt lgkmcnt(0)")
    a("v_and_b32 v12, v8, v9")
    a("v_and_b32 v0, v10, v11")
    a("v_and_b32 v12, v12, v0")
    a("v_max_u32 v8, v8, v9")
    a("v_max_u32 v10, v10, v11")
    a("v_max_u32 v8, v8, v10")
    a(f"v_readfirstlane_b32 s{sT[0]}, v12")
    a(f"v_readfirstlane_b32 s{sT[1]}, v8")
    a(f"s_add_u32 s{sT[3]}, s{sT[3]}, 1")
    a(f"s_cmp_gt_u32 s{sT[3]}, 100000")
    a("s_cbranch_scc1 L_PGO" + sfx)
    a(f"s_bitcmp1_b32 s{sT[0]}, 31")
    a("s_cbranch_scc0 L_PSPIN" + sfx)
    g.lab("L_PGO" + sfx)
    g.reset_counts()
    a(f"s_bfe_u32 s{sT[1]}, s{sT[1]}, 0x80007")
    a(f"s_sub_i32 s{sT[1]}, 139, s{sT[1]}")
    a(f"s_max_i32 s{sT[1]}, s{sT[1]}, -60")
    a(f"s_min_i32 s{sT[1]}, s{sT[1]}, 60")
    a(f"s_sub_i32 s{sT[2]}, 127, s{sT[1]}")
    a(f"s_lshl_b32 s{sT[2]}, s{sT[2]}, 23")
    a(f"s_cmp_lt_u32 s2, 64")
    a(f"s_cselect_b32 s{sT[3]}, 1, 0")
    a(f"s_add_i32 s{sT[1]}, s{sT[1]}, s{sT[3]}")
    a(f"s_lshl_b32 s{sT[1]}, s{sT[1]}, 23")
    Lg = -math.log2(math.e)
    ks = [-(2 / 9) * Lg, (2 / 90) * Lg, (4 / 90) * Lg, Lg / 180, 2 * Lg / 180, (2 / 3) * Lg, Lg / 3]
    k1, k2, k2d, kh, khd, k0, ki = [sK + i for i in range(7)]
    for i, k in enumerate(ks):
        a(f"s_add_u32 s{sK + i}, s{sT[1]}, 0x{fbits(k):08x}")
    R = lambda ph, p, c: 40 + (ph * 4 + p) * 4 + c
    for c in range(4):
        G = lambda r: 16 + 4 * r + c
        e, o, t = 36, 37, 38
        a(f"v_fma_f32 v{e}, 4.0, v{G(2)}, v{G(0)}")
        a(f"v_fma_f32 v{o}, 4.0, v{G(3)}, v{G(1)}")
        a(f"v_mul_f32 v{t}, 4.0, v{G(4)}")
        a(f"v_fma_f32 v{e}, 4.0, v{t}, v{e}")
        a(f"v_mul_f32 v{e}, s{k2}, v{e}")
        a(f"v_fma_f32 v{R(0, 0, c)}, s{k2d}, v{o}, v{e}")
        a(f"v_fma_f32 v{R(0, 1, c)}, -s{k2d}, v{o}, v{e}")
        a(f"v_fma_f32 v{e}, 4.0, v{G(2)}, v{G(4)}")
        a(f"v_fma_f32 v{o}, 4.0, v{G(1)}, v{G(3)}")
        a(f"v_mul_f32 v{t}, 4.0, v{G(0)}")
        a(f"v_fma_f32 v{e}, 4.0, v{t}, v{e}")
        a(f"v_mul_f32 v{e}, s{kh}, v{e}")
        a(f"v_fma_f32 v{R(0, 2, c)}, s{khd}, v{o}, v{e}")
        a(f"v_fma_f32 v{R(0, 3, c)}, -s{khd}, v{o}, v{e}")
        a(f"v_add_f32 v{e}, v{G(0)}, v{G(2)}")
        a(f"v_add_f32 v{o}, v{G(1)}, v{G(3)}")
        a(f"v_add_f32 v{e}, v{e}, v{G(4)}")
        a(f"v_mul_f32 v{e}, s{k1}, v{e}")
        a(f"v_fma_f32 v{R(1, 0, c)}, s{k1}, v{o}, v{e}")
        a(f"v_fma_f32 v{R(1, 1, c)}, -s{k1}, v{o}, v{e}")
        a(f"v_mul_f32 v{R(1, 2, c)}, s{k0}, v{G(0)}")
        a(f"v_mul_f32 v{R(1, 3, c)}, s{ki}, v{G(4)}")
    for ph in range(2):
        for p in range(4):
            for cp in range(2):
                d = R(ph, p, 2 * cp)
                a(f"v_cvt_pk_f16_f32 v{d}, v{d}, v{d + 1}")
                o = ph * 2048 + p * 256 + cp * 32
                g.lds(f"ds_write_b16 v14, v{d} offset:{o}")
                g.lds(f"ds_write_b16_d16_hi v14, v{d} offset:{o + 16}")
    g.wl0()
    ids = []
    for blk in range(4):
        ids.append(g.lds(f"ds_read_b128 {r4(16 + 4 * blk)}, v15 offset:{blk * 1024}"))
    a(f"s_mul_i32 s{sT[0]}, s2, {USTR}")
    a(f"s_lshl_b32 s{sT[3]}, s{sWV}, 11")
    a(f"s_add_u32 s{sT[3]}, s{sT[3]}, s{sT[0]}")
    a(f"s_add_u32 s{sT[4]}, s{sT[3]}, 8192")
    for blk in range(4):
        g.wl(ids[blk])
        so = sT[3] if blk < 2 else sT[4]
        g.vm(f"buffer_store_dwordx4 {r4(16 + 4 * blk)}, v{vL16}, {srd(sWS)}, s{so} offen offset:{(blk % 2) * 1024} sc1")
    a(f"v_mov_b32 v12, s{sT[2]}")
    a(f"s_add_u32 s{sT[0]}, s{sT[0]}, 16384")
    a(f"v_mov_b32 v13, s{sT[0]}")
    a(f"s_mov_b64 exec, 1")
    g.vm(f"buffer_store_dword v12, v13, {srd(sWS)}, 0 offen sc1")
    a(f"s_mov_b64 exec, -1")


def emit_prep_wo(g):
    a = g.a
    lane = vT[1]
    a(f"s_sub_u32 s{sT[0]}, s2, 128")
    a(f"s_lshr_b32 s{sT[1]}, s{sT[0]}, 1")
    a(f"s_and_b32 s{sT[2]}, s{sT[0]}, 1")
    a(f"s_lshl_b32 s{sT[3]}, s{sT[1]}, 12")
    a(f"s_lshl_b32 s{sT[4]}, s{sT[2]}, 8")
    a(f"s_add_u32 s{sT[3]}, s{sT[3]}, s{sT[4]}")
    a(f"v_lshrrev_b32 v8, 2, v{vL16}")
    for jj in range(8):
        g.vm(f"buffer_load_dword v{jj}, v8, {srd(sWO)}, s{sT[3]} offen offset:{jj * 512}")
    a(f"v_lshlrev_b32 v9, 14, v{vG}")
    a(f"v_bfe_u32 v10, v{vN}, 1, 1")
    a(f"v_lshl_add_u32 v9, v10, 10, v9")
    a(f"v_lshrrev_b32 v10, 2, v{vN}")
    a(f"v_lshl_add_u32 v9, v10, 6, v9")
    a(f"v_and_b32 v10, 1, v{vN}")
    a(f"v_lshl_add_u32 v9, v10, 5, v9")
    a(f"s_lshr_b32 s{sT[3]}, s{sT[1]}, 2")
    a(f"s_and_b32 s{sT[4]}, s{sT[1]}, 3")
    a(f"s_lshl_b32 s{sT[3]}, s{sT[3]}, 11")
    a(f"s_lshl_b32 s{sT[4]}, s{sT[4]}, 8")
    a(f"s_lshl_b32 s{sT[2]}, s{sT[2]}, 16")
    a(f"s_add_u32 s{sT[3]}, s{sT[3]}, s{sT[4]}")
    a(f"s_add_u32 s{sT[3]}, s{sT[3]}, s{sT[2]}")
    a(f"s_add_u32 s{sT[3]}, s{sT[3]}, {WO_OFF}")
    a(f"s_mov_b32 s{sT[5]}, 0x05040100")
    a(f"s_mov_b32 s{sT[6]}, 0x07060302")
    g.wv0()
    for q in range(4):
        a(f"v_perm_b32 v{12 + q}, v{2 * q + 1}, v{2 * q}, s{sT[5]}")
        a(f"v_perm_b32 v{16 + q}, v{2 * q + 1}, v{2 * q}, s{sT[6]}")
    g.vm(f"buffer_store_dwordx4 v[12:15], v9, {srd(sWS)}, s{sT[3]} offen sc1")
    g.vm(f"buffer_store_dwordx4 v[16:19], v9, {srd(sWS)}, s{sT[3]} offen offset:16 sc1")


def emit_clear_inbox(g):
    a = g.a
    for i in range(4):
        a(f"v_mov_b32 v{20 + i}, -1")
    a(f"s_lshl_b32 s{sT[0]}, s2, 15")
    a(f"s_lshl_b32 s{sT[1]}, s{sWV}, 13")
    a(f"s_add_u32 s{sT[0]}, s{sT[0]}, s{sT[1]}")
    a(f"s_add_u32 s{sT[0]}, s{sT[0]}, {INBOX}")
    a(f"s_add_u32 s{sT[1]}, s{sT[0]}, 4096")
    for i in range(8):
        g.vm(f"buffer_store_dwordx4 v[20:23], v{vL16}, {srd(sWS)}, s{sT[i // 4]} offen offset:{(i % 4) * 1024} sc1")


def gen_prep_kernel(g):
    a = g.a
    g.sfx = "_P"
    g.L.append(f".globl {PN}")
    g.L.append(".p2align 8")
    g.L.append(f".type {PN},@function")
    g.lab(PN, safe=True)
    tm = g.timing
    g.timing = False
    common_head(g, 256)
    a(f"v_mov_b32 v{vT[3]}, v0")
    a(f"s_cmp_ge_u32 s{sWAVE}, 4")
    a("s_cbranch_scc1 L_P_CLR")
    a("s_cmp_ge_u32 s2, 128")
    a("s_cbranch_scc1 L_P_NOU")
    emit_prep_loads(g)
    g.lab("L_P_NOU")
    a("v_mov_b32 v12, 0")
    a("v_mov_b32 v13, 0")
    a("v_mov_b32 v14, 0")
    a("v_mov_b32 v15, 0")
    a(f"v_mov_b32 v16, {SYNC}")
    a("ds_write_b128 v16, v[12:15]")
    a("ds_write_b128 v16, v[12:15] offset:16")
    a("s_waitcnt lgkmcnt(0)")
    a("s_barrier")
    a("s_cmp_ge_u32 s2, 128")
    a("s_cbranch_scc1 L_P_WO")
    emit_prep_u(g)
    a("s_branch L_P_FIN")
    g.lab("L_P_WO")
    a("s_cmp_ge_u32 s2, 192")
    a("s_cbranch_scc1 L_P_FIN")
    a(f"s_cmp_lg_u32 s{sWAVE}, 0")
    a("s_cbranch_scc1 L_P_FIN")
    emit_prep_wo(g)
    a("s_branch L_P_FIN")
    g.lab("L_P_CLR")
    a("s_barrier")
    emit_clear_inbox(g)
    g.lab("L_P_FIN")
    a("s_waitcnt vmcnt(0)")
    g.reset_counts()
    g.lab("L_END_P", safe=True)
    a("s_endpgm")
    g.timing = tm


def kd(name):
    return [f".amdhsa_kernel {name}", "  .amdhsa_next_free_vgpr 256", "  .amdhsa_next_free_sgpr 102", "  .amdhsa_accum_offset 256",
            "  .amdhsa_group_segment_fixed_size 0", "  .amdhsa_kernarg_size 48", "  .amdhsa_user_sgpr_count 2",
            "  .amdhsa_user_sgpr_kernarg_segment_ptr 1", "  .amdhsa_system_sgpr_workgroup_id_x 1", ".end_amdhsa_kernel"]


def gen(timing=False, opts=None):
    g = Gen(timing)
    g.opts = opts or {}
    head = [HEADER + f"; @launch kernel={PN} grid=(256,1,1) block=(512,1,1) lds={LDS}",
            f"; @launch kernel={KN} grid=(256,1,1) block=(512,1,1) lds={LDS}",
            '.amdgcn_target "amdgcn-amd-amdhsa--gfx950"', ".text"]
    gen_main_kernel(g)
    gen_prep_kernel(g)
    body = g.finish()
    tail = ['.section .rodata,"a"', ".p2align 6"] + kd(KN) + [".p2align 6"] + kd(PN)
    return "\n".join(head + body + tail) + "\n"


if __name__ == "__main__":
    args = [x for x in sys.argv[1:] if not x.startswith("--")]
    out = args[0] if args else "w2.s"
    opts = {}
    for x in sys.argv[1:]:
        if x.startswith("--") and "=" in x:
            k, v = x[2:].split("=")
            opts[k] = int(v)
    open(out, "w").write(gen("--timing" in sys.argv, opts))
```

```python
HEAD = open('standalone__autoregressive_conv_wavenet__speech.s').read().split("; @launch")[0]
KN = "standalone__autoregressive_conv_wavenet__speech_kernel"
def gen(name, pat, ost, nw=4):
    L = []
    a = L.append
    a(HEAD + f"; @launch grid=(256,1,1) block=({nw*64},1,1) lds=163840")
    a('.amdgcn_target "amdgcn-amd-amdhsa--gfx950"\n.text\n.globl %s\n.p2align 8\n.type %s,@function\n%s:' % (KN, KN, KN))
    a("s_cmp_ge_u32 s2, 250\ns_cbranch_scc1 L_END")
    a("s_load_dwordx4 s[36:39], s[0:1], 16")
    a("s_load_dwordx4 s[40:43], s[0:1], 32")
    a("v_lshrrev_b32 v1, 6, v0\nv_and_b32 v2, 63, v0\ns_nop 1\nv_readfirstlane_b32 s28, v1")
    a("s_waitcnt lgkmcnt(0)")
    a("s_mov_b32 s24, s40\ns_mov_b32 s25, s41\ns_mov_b32 s26, 256\ns_mov_b32 s27, 0x00020000")
    a("s_mov_b32 s20, s42\ns_mov_b32 s21, s43\ns_mov_b32 s22, 13107200\ns_mov_b32 s23, 0x00020000")
    a("s_mov_b32 s16, s38\ns_mov_b32 s17, s39\ns_mov_b32 s18, 16384000\ns_mov_b32 s19, 0x00020000")
    a("v_and_b32 v3, 15, v2\nv_lshrrev_b32 v4, 4, v2")
    ni = 64 // nw
    offs = []
    if pat == 0:
        a("v_lshrrev_b32 v5, 1, v3\nv_lshlrev_b32 v10, 12, v5\nv_and_b32 v5, 1, v3\nv_lshl_add_u32 v10, v5, 9, v10\nv_lshl_add_u32 v10, v4, 4, v10")
        if nw == 4:
            a("s_lshl_b32 s30, s28, 7")
            offs = [(NT // 2) * 32768 + (2 * (NT % 2) + s) * 1024 + mt * 64 for NT in range(4) for mt in range(2) for s in range(2)]
        else:
            a("s_lshl_b32 s30, s28, 6")
            offs = [(R // 4) * 32768 + (R % 4) * 1024 for R in range(8)]
    elif pat == 1:
        a("v_lshlrev_b32 v10, 4, v2")
        a(f"s_mul_i32 s30, s28, {ni * 1024}")
        offs = [i * 1024 for i in range(ni)]
    elif pat == 2:
        a("v_lshrrev_b32 v5, 3, v2\nv_lshlrev_b32 v10, 9, v5\nv_and_b32 v5, 7, v2\nv_lshl_add_u32 v10, v5, 4, v10")
        a("s_lshl_b32 s30, s28, 7")
        offs = [i * 4096 for i in range(16)]
    elif pat == 3:
        a("v_lshlrev_b32 v10, 9, v3\nv_lshl_add_u32 v10, v4, 4, v10")
        a("s_lshl_b32 s30, s28, 7")
        offs = [(i // 2) * 8192 + (i % 2) * 64 for i in range(16)]
    elif pat == 4:
        a("v_lshrrev_b32 v5, 3, v2\nv_lshlrev_b32 v10, 12, v5\nv_and_b32 v5, 7, v2\nv_lshl_add_u32 v10, v5, 4, v10")
        a("s_lshl_b32 s30, s28, 7")
        offs = [(i // 8) * 32768 + (i % 8) * 512 for i in range(16)]
    a("s_lshl_b32 s31, s2, 16\ns_add_u32 s30, s30, s31\nv_add_u32 v10, s30, v10")
    for i in range(4):
        a(f"v_mov_b32 v{12+i}, v0")
    a("s_cmp_lg_u32 s28, 0\ns_cbranch_scc1 L_B")
    a("s_mov_b32 s31, 1\ns_atomic_add s31, s[24:25], 0 glc\ns_waitcnt lgkmcnt(0)")
    a("s_cmp_lg_u32 s31, 249\ns_cbranch_scc1 L_P\ns_mov_b32 s31, 1\ns_atomic_add s31, s[24:25], 128")
    a("L_P:\nv_mov_b32 v6, 0\ns_mov_b32 s33, 0")
    a("L_Q:\nbuffer_load_dword v7, v6, s[24:27], 0 offen offset:128 sc1\ns_add_u32 s33, s33, 1\ns_waitcnt vmcnt(0)\nv_readfirstlane_b32 s31, v7\ns_cmp_gt_u32 s33, 100000\ns_cbranch_scc1 L_B\ns_cmp_eq_u32 s31, 0\ns_cbranch_scc1 L_Q")
    a("L_B:\ns_barrier")
    a("s_memtime s[50:51]")
    for o in offs:
        a(f"s_mov_b32 s31, {o & ~4095}")
        a(f"buffer_store_dwordx4 v[12:15], v10, s[16:19], s31 offen offset:{o & 4095}" + ["", " nt", " sc1", " sc0 sc1"][ost])
    a("s_memtime s[52:53]")
    a("s_waitcnt vmcnt(0)")
    a("s_memtime s[54:55]")
    a("s_waitcnt lgkmcnt(0)")
    a("s_sub_u32 s52, s52, s50\ns_sub_u32 s54, s54, s50")
    a("v_mov_b32 v4, s52\nv_mov_b32 v5, s54")
    a("s_lshl_b32 s29, s2, 3\ns_add_u32 s29, s29, s28\ns_lshl_b32 s29, s29, 3\nv_mov_b32 v6, s29\ns_mov_b64 exec, 1")
    a("buffer_store_dwordx2 v[4:5], v6, s[20:23], 0 offen")
    a("L_END:\ns_endpgm")
    a('.section .rodata,"a"\n.p2align 6')
    a(f".amdhsa_kernel {KN}\n  .amdhsa_next_free_vgpr 32\n  .amdhsa_next_free_sgpr 102\n  .amdhsa_accum_offset 32\n  .amdhsa_group_segment_fixed_size 0\n  .amdhsa_kernarg_size 48\n  .amdhsa_user_sgpr_count 2\n  .amdhsa_user_sgpr_kernarg_segment_ptr 1\n  .amdhsa_system_sgpr_workgroup_id_x 1\n.end_amdhsa_kernel")
    open(name, "w").write("\n".join(L) + "\n")
names = []
for pat in range(5):
    for ost in (0, 3):
        n = f"s_p{pat}o{ost}.s"; gen("bench/" + n, pat, ost); names.append(n)
for pat in (0, 1):
    for ost in (0, 3):
        n = f"s_p{pat}o{ost}w8.s"; gen("bench/" + n, pat, ost, 8); names.append(n)
print(" ".join(names))
print(", ".join('"bench/%s"' % n for n in names))
```
